```python
import torch

def _softmax(x, axis=-1):
    return torch.softmax(x, dim=axis)
def _gelu(x):
    return torch.nn.functional.gelu(x, approximate="tanh")
def _silu(x):
    return torch.nn.functional.silu(x)
def _sigmoid(x):
    return torch.sigmoid(x)
def _layernorm(x, axis=-1, eps=1e-5):
    m = x.mean(dim=axis, keepdim=True)
    v = x.var(dim=axis, keepdim=True, unbiased=False)
    return (x - m) / torch.sqrt(v + eps)
def _scatter_add(tgt, idx, src, axis=0):
    return tgt.clone().index_add_(axis, idx, src)
def _segment_sum(src, seg, n):
    out = torch.zeros((n,) + src.shape[1:], dtype=src.dtype)
    return out.index_add_(0, seg, src)
def _pad(x, pw):
    flat = tuple(v for pair in reversed(pw) for v in pair)
    return torch.nn.functional.pad(x, flat)

kernel_name = 'sequential_preLN__compressed_kv_cla__dense_activation_silu__decode'

def setup_inputs():

    _w = (lambda a: (lambda t: t.to(torch.bfloat16) if t.is_floating_point() else t)(torch.as_tensor(a)))
    def _A_setup():
        B, H, Sq, Sk, D, M = 1, 32, 1, 8192, 128, 576
        Dc = 4 * D
        return {
            "x": _w((lambda *s: torch.randn(*s, dtype=torch.bfloat16) * 0.05)(B, Sq, M)),
            "c_kv": _w((lambda *s: torch.randn(*s, dtype=torch.bfloat16) * 0.8)(B, Sk, Dc)),
            "w_q": _w((lambda *s: torch.randn(*s, dtype=torch.bfloat16) * 3.2)(M, H, D) * (M ** -0.5)),
            "w_uk": _w((lambda *s: torch.randn(*s, dtype=torch.bfloat16) * 3.2)(Dc, H, D) * (Dc ** -0.5)),
            "w_uv": _w((lambda *s: torch.randn(*s, dtype=torch.bfloat16) * 0.8)(Dc, H, D) * (Dc ** -0.5)),
            "w_o": _w((lambda *s: torch.randn(*s, dtype=torch.bfloat16) * 0.8)(H, D, M) * ((H * D) ** -0.5)),
        }
    _A_in = _A_setup()

    def _B_setup():
        B, S, D, F = 1, 1, 576, 4608
        return {
            "x": _w((lambda *s: torch.randn(*s, dtype=torch.bfloat16) * 0.05)(B, S, D)),
            "w1": _w((lambda *s: torch.randn(*s, dtype=torch.bfloat16) * 3.2)(D, F) * (D ** -0.5)),
            "w2": _w((lambda *s: torch.randn(*s, dtype=torch.bfloat16) * 0.2)(F, D) * (F ** -0.5)),
        }
    _B_in = _B_setup()

    return {
        "A_x": _A_in["x"],
        "A_c_kv": _A_in["c_kv"],
        "A_w_q": _A_in["w_q"],
        "A_w_uk": _A_in["w_uk"],
        "A_w_uv": _A_in["w_uv"],
        "A_w_o": _A_in["w_o"],
        "B_x": _B_in["x"],
        "B_w1": _B_in["w1"],
        "B_w2": _B_in["w2"],
    }

def reference(A_x, A_c_kv, A_w_q, A_w_uk, A_w_uv, A_w_o, B_x, B_w1, B_w2):
    def _A_ref(x, c_kv, w_q, w_uk, w_uv, w_o):
        B, Sq, M = x.shape[0], x.shape[1], x.shape[2]
        Sk = c_kv.shape[1]
        H, D = w_q.shape[1], w_q.shape[2]
        q = torch.einsum("bqm,mhd->bhqd", x, w_q)
        k = torch.einsum("bkc,chd->bhkd", c_kv, w_uk)
        v = torch.einsum("bkc,chd->bhkd", c_kv, w_uv)
        scores = torch.einsum("bhqd,bhkd->bhqk", q, k) * (D ** -0.5)
        off = Sk - Sq
        qi = torch.arange(Sq)[:, None]
        kj = torch.arange(Sk)[None, :]
        cmask = kj <= (qi + off)
        scores = torch.where(cmask[None, None], scores, -1e9)
        p = _softmax(scores, axis=-1)
        ctx = torch.einsum("bhqk,bhkd->bhqd", p, v)
        return torch.einsum("bhqd,hdm->bqm", ctx, w_o)

    def _B_ref(x, w1, w2):
        h = torch.einsum("bsd,df->bsf", x, w1)
        h = _silu(h)
        out = torch.einsum("bsf,fd->bsd", h, w2)
        return out

    x = A_x
    h = x + _A_ref(_layernorm(x, axis=-1), A_c_kv, A_w_q, A_w_uk, A_w_uv, A_w_o)
    h2 = h + _B_ref(_layernorm(h, axis=-1), B_w1, B_w2)
    return h2
```

```python
import re

TRANS = ("v_exp_f32", "v_log_f32", "v_rcp_f32", "v_rsq_f32", "v_sqrt_f32", "v_sin_f32", "v_cos_f32")

def regs_of(tok):
    tok = tok.strip()
    tok = tok.lstrip("-")
    m = re.fullmatch(r"abs\((.*)\)|\|(.*)\|", tok)
    if m: tok = m.group(1) or m.group(2)
    m = re.fullmatch(r"([vsa])\[(\d+):(\d+)\]", tok)
    if m: return [(m.group(1), i) for i in range(int(m.group(2)), int(m.group(3)) + 1)]
    m = re.fullmatch(r"([vsa])(\d+)", tok)
    if m: return [(m.group(1), int(m.group(2)))]
    if tok == "vcc": return [("s", "vcc")]
    if tok == "exec": return [("s", "exec")]
    if tok == "m0": return [("s", "m0")]
    return []

class Ins:
    def __init__(self, text):
        self.text = text
        t = text.split(";")[0].strip()
        self.op = t.split()[0]
        rest = t[len(self.op):].strip()
        parts = [p.strip() for p in re.split(r",(?![^\[]*\])", rest)] if rest else []
        self.mods = ""
        if parts:
            last = parts[-1].split(None, 1)
            if len(last) > 1:
                parts[-1] = last[0]; self.mods = last[1]
        self.ops = parts
        op = self.op
        R = [regs_of(p) for p in parts]
        flat = lambda L: [x for l in L for x in l]
        self.kind = "other"; self.dst = []; self.src = []
        self.dpp = ("_dpp" in op)
        if op.startswith("v_mfma") or op.startswith("v_smfmac"):
            self.kind = "mfma"; self.dst = R[0]; self.a = R[1]; self.b = R[2]; self.c = R[3] if op.startswith("v_mfma") else R[0]
            self.src = flat(R[1:]) + (R[0] if op.startswith("v_smfmac") else [])
            self.passes = 8 if "32x32" in op else 4
        elif op.startswith("v_cmp"):
            self.kind = "valu"; self.dst = R[0]; self.src = flat(R[1:])
        elif op.startswith("v_readfirstlane") or op.startswith("v_readlane"):
            self.kind = "valu"; self.dst = R[0]; self.src = flat(R[1:]); self.rl = True
        elif op.startswith("v_permlane"):
            self.kind = "valu"; self.dst = flat(R); self.src = flat(R)
        elif op.startswith("v_"):
            self.kind = "valu"; self.dst = R[0] if R else []; self.src = flat(R[1:])
            if "_co_" in op: self.dst = R[0] + R[1]; self.src = flat(R[2:])
            if op.startswith(("v_fmac", "v_dot2c", "v_writelane")) or self.dpp: self.src = self.src + R[0]
            if op.startswith("v_cndmask") and len(parts) == 3: self.src = self.src + [("s", "vcc")]
        elif op.startswith("ds_"):
            self.kind = "ds"
            if op.startswith(("ds_read", "ds_bpermute", "ds_permute", "ds_swizzle")) or "_rtn" in op:
                self.dst = R[0]; self.src = flat(R[1:])
            else: self.src = flat(R)
        elif op.startswith(("global_", "buffer_")):
            self.kind = "vmem"
            if "load_lds" in op or (op.startswith("buffer_load") and re.search(r"\blds\b", self.mods)):
                self.src = flat(R) + [("s", "m0")]; self.dma = True
            elif "_load" in op:
                self.dst = R[0]; self.src = flat(R[1:])
            else:
                self.src = flat(R)
                self.wide = R[1] if op.startswith("global_store") and ("x3" in op or "x4" in op) else []
        elif op.startswith("s_"):
            self.kind = "salu"
            if op.startswith(("s_cmp", "s_cbranch", "s_branch", "s_waitcnt", "s_nop", "s_barrier", "s_sleep", "s_endpgm", "s_setprio", "s_bitcmp")):
                self.src = flat(R)
            else:
                self.dst = R[0] if R else []; self.src = flat(R[1:])
                if "saveexec" in op: self.dst = self.dst + [("s", "exec")]
        self.states = 1
        if op == "s_nop": self.states = int(parts[0], 0) + 1

def need(p, c):
    n = 0
    pd, cs, cd = set(p.dst), set(c.src), set(c.dst)
    vecd = {r for r in pd if r[0] in "va"}
    sd = {r for r in pd if r[0] == "s"}
    if p.kind == "valu":
        if vecd & cs:
            if c.kind == "valu" and c.dpp: n = max(n, 2)
            if c.op.startswith("v_permlane"): n = max(n, 2)
            if getattr(c, "rl", False): n = max(n, 1)
            if c.kind == "mfma": n = max(n, 2)
            if p.op.startswith(TRANS): n = max(n, 1)
            if "sdwa" in p.op or "op_sel" in p.mods: n = max(n, 1)
        if p.op.startswith("v_dot"):
            if vecd & (cs | cd):
                same = (c.op == p.op)
                if same:
                    ab = set()
                    for t in c.ops[1:3]: ab |= set(regs_of(t))
                    if vecd & ab: n = max(n, 3)
                else: n = max(n, 3)
        if sd & cs:
            if c.kind == "valu": n = max(n, 4 if getattr(c, "rl", False) or c.op.startswith("v_writelane") else 2)
            if c.kind == "vmem": n = max(n, 5)
            if c.kind == "salu": n = max(n, 1)
    if p.kind == "mfma":
        big = {4: 8, 8: 12}[p.passes]; ovl = {4: 6, 8: 10}[p.passes]
        if c.kind == "mfma":
            if vecd & (set(c.a) | set(c.b)): n = max(n, big)
            if vecd & set(c.c) and not (c.c == p.dst and c.passes == p.passes): n = max(n, ovl)
            if vecd & cd and not (c.c == p.dst): n = max(n, ovl)
        elif vecd & (cs | cd): n = max(n, big)
        if c.kind == "valu" and set(p.c) & cd: n = max(n, {4: 3, 8: 7}[p.passes])
    if p.kind == "salu" and ("s", "m0") in pd and getattr(c, "dma", False): n = max(n, 1)
    if p.kind == "vmem" and getattr(p, "wide", None) and set(p.wide) & cd: n = max(n, 2)
    return n

class Asm:
    def __init__(self):
        self.items = []
    def __call__(self, text):
        for line in text.strip().split("\n"):
            line = line.strip()
            if not line or line.startswith(";"): continue
            if re.fullmatch(r"[\w.]+:", line): self.items.append(("l", line[:-1]))
            elif line.startswith("."): self.items.append(("r", line))
            else: self.items.append(("i", Ins(line)))
    def finish(self):
        out = []
        hist = []
        def req(hist, c):
            d = 0; worst = 0
            for p in reversed(hist):
                k = need(p, c) - d
                worst = max(worst, k)
                d += p.states
                if d > 20: break
            return worst
        inserted = 0
        for kind, it in self.items:
            if kind == "i":
                k = req(hist, it)
                if k > 0:
                    nop = Ins(f"s_nop {k-1}"); out.append(("i", nop)); hist.append(nop); inserted += 1
                out.append((kind, it)); hist.append(it)
                if it.op in ("s_branch", "s_endpgm"): hist = []
                hist = hist[-24:]
            else: out.append((kind, it))
        pos = {it: i for i, (k, it) in enumerate(out) if k == "l"}
        for i, (k, it) in enumerate(out):
            if k == "i" and it.op.startswith(("s_cbranch", "s_branch")):
                tgt = it.ops[0]
                h = []
                j = i
                while j >= 0 and len(h) < 24:
                    if out[j][0] == "i":
                        if j != i and out[j][1].op in ("s_branch", "s_endpgm"): break
                        h.insert(0, out[j][1])
                    j -= 1
                j = pos[tgt]; cnt = 0
                while j < len(out) and cnt < 20:
                    if out[j][0] == "i":
                        c = out[j][1]
                        if req(h, c) > 0:
                            raise Exception(f"hazard across branch to {tgt}: {c.text}")
                        h.append(c); cnt += c.states
                        if c.op in ("s_branch", "s_endpgm"): break
                    j += 1
        txt = []
        for k, it in out:
            txt.append("    " + it.text if k == "i" else (it + ":" if k == "l" else it))
        self.inserted = inserted
        return "\n".join(txt)
```

```python
import sys, struct, math
from asmlib import Asm

KNAME = "sequential_preLN__compressed_kv_cla__dense_activation_silu__decode_kernel"
def f32(x): return "0x%08x" % struct.unpack("<I", struct.pack("<f", x))[0]

WS_FLAG = 0x1000
WS_A    = 0x8000
WS_B    = 0x18000
WS_ML   = 0x20000
WS_D    = 0x28000
WS_EF   = 0x30000
WS_C    = 0x80000
WS_STAMP= 0x300000
XL, QP, UL, OL, RL, MLL = 0, 5120, 8192, 40960, 106496, 109056
CK, QL, PL, MM, LL, HL, FL = 0, 131072, 147456, 151552, 151616, 151680, 152960
W1L, W2L = 0, 73728
LDS_BYTES = 153600
TIMEOUT = 1 << 18

X, CKV, WQ, WUK, WUV, WO, W1, W2, OUT, WS = "s[8:9]", "s[10:11]", "s[12:13]", "s[14:15]", "s[16:17]", "s[18:19]", "s[22:23]", "s[24:25]", "s[26:27]", "s[30:31]"

def vr(b, n=4): return f"v[{b}:{b+n-1}]"

def gen(diag=False, opt=None):
    opt = opt or {}
    a = Asm()
    def stamp(i):
        if diag: a(f"s_memrealtime s[{64+2*i}:{65+2*i}]")
    def tmo():
        a("s_sub_u32 s35, s35, 1\ns_cbranch_scc1 L_end")
    def masks(base, t0, t1):
        a(f"""v_and_b32 v{t0}, 1, v1
              v_lshlrev_b32 v{t0}, 4, v{t0}
              v_mov_b32 v{t1}, 0xffff
              v_lshlrev_b32 v{t0}, v{t0}, v{t1}
              v_lshrrev_b32 v{t1}, 1, v1""")
        for dd in range(4):
            a(f"v_cmp_eq_u32 vcc, {dd}, v{t1}\nv_cndmask_b32 v{base+dd}, 0, v{t0}, vcc")
    def allred_row(regs, op):
        for ctl in ["quad_perm:[1,0,3,2]", "quad_perm:[2,3,0,1]", "row_half_mirror", "row_mirror"]:
            for r in regs: a(f"{op}_dpp v{r}, v{r}, v{r} {ctl} row_mask:0xf bank_mask:0xf")
    def allred_g(regs, tmps, op, steps=(16, 32)):
        for st in steps:
            for r, t in zip(regs, tmps): a(f"v_mov_b32 v{t}, v{r}")
            for r, t in zip(regs, tmps): a(f"v_permlane{st}_swap_b32 v{r}, v{t}")
            for r, t in zip(regs, tmps): a(f"{op} v{r}, v{r}, v{t}")
    def pack16(x, t, o):
        a(f"""v_mov_b32_dpp v{t}, v{x} quad_perm:[1,1,3,3] row_mask:0xf bank_mask:0xf
              v_cvt_pk_bf16_f32 v{o}, v{x}, v{t}
              v_mov_b32_dpp v{o+1}, v{o} row_shl:2 row_mask:0xf bank_mask:0xf
              v_mov_b32_dpp v{o+2}, v{o} row_shl:4 row_mask:0xf bank_mask:0xf
              v_mov_b32_dpp v{o+3}, v{o} row_shl:6 row_mask:0xf bank_mask:0xf""")
    def mktag():
        a("s_mul_i32 s6, s6, 0x0019660d\ns_add_u32 s6, s6, 0x3c6ef35f")
    def ln_stats(s1, s2, t1, t2, scale):
        allred_row([s1, s2], "v_add_f32")
        allred_g([s1, s2], [t1, t2], "v_add_f32")
        a(f"""v_mul_f32 v{s1}, {f32(1/576)}, v{s1}
              v_mul_f32 v{s2}, {f32(1/576)}, v{s2}
              v_fma_f32 v{s2}, -v{s1}, v{s1}, v{s2}
              v_max_f32 v{s2}, 0, v{s2}
              v_add_f32 v{s2}, {f32(1e-5)}, v{s2}
              v_rsq_f32 v{s2}, v{s2}""")
        if scale != 1.0: a(f"v_mul_f32 v{s2}, {f32(scale)}, v{s2}")

    a(f"""s_cmp_ge_u32 s2, 0x100
          s_cbranch_scc1 L_exit
          s_load_dwordx16 s[8:23], s[0:1], 0
          s_load_dwordx8 s[24:31], s[0:1], 64""")
    if diag:
        for i in range(12): a(f"s_mov_b64 s[{64+2*i}:{65+2*i}], 0")
    stamp(0)
    a(f"""v_lshrrev_b32 v1, 6, v0
          v_and_b32 v0, 63, v0
          v_readfirstlane_b32 s3, v1
          s_and_b32 s4, s2, 7
          s_lshr_b32 s5, s2, 3
          v_and_b32 v1, 15, v0
          v_lshrrev_b32 v2, 4, v0
          s_mov_b32 s35, {TIMEOUT}
          s_cmp_lt_u32 s5, 16
          s_cbranch_scc1 L_g1
          s_getpc_b64 s[40:41]
          L_pc:
          s_sub_u32 s40, s40, L_pc-{KNAME}
          s_subb_u32 s41, s41, 0
          s_lshl_b32 s7, s3, 13
          v_lshl_add_u32 v3, v0, 7, s7
          v_min_u32 v3, L_codeend-{KNAME}-4, v3
          s_cmp_ge_u32 s7, L_codeend-{KNAME}
          s_cbranch_scc1 L_att
          global_load_dword v255, v3, s[40:41]
          s_branch L_att
          L_g1:
          s_lshr_b32 s32, s5, 2
          s_lshl_b32 s7, s4, 2
          s_add_u32 s32, s32, s7
          s_and_b32 s33, s5, 3
          s_lshl_b32 s36, s32, 2
          s_add_u32 s36, s36, s33
          s_lshl_b32 s7, s32, 8
          v_lshl_add_u32 v6, v1, 4, s7
          s_cmp_ge_u32 s3, 4
          s_cbranch_scc1 L_quk""")
    a(f"""s_mul_i32 s34, s33, 144
          s_mul_i32 s7, s3, 36
          s_add_u32 s34, s34, s7
          v_mul_u32_u24 v4, 9, v2
          v_add_u32 v4, s34, v4
          v_lshl_add_u32 v5, v4, 13, v6
          v_lshlrev_b32 v6, 4, v0
          v_lshlrev_b32 v7, 2, v0
          v_mov_b32 v12, 0
          s_waitcnt lgkmcnt(0)
          global_load_dwordx4 v[8:11], v6, {X}
          s_mov_b32 exec_hi, 0
          global_load_dword v12, v7, {X} offset:1024
          s_mov_b32 exec_hi, -1""")
    for t in range(9):
        a(f"global_load_dwordx4 {vr(64+4*t)}, v5, {WQ} nt")
        if t < 8: a("v_add_u32 v5, 0x2000, v5")
    a(f"s_load_dword s6, {WS}, 0\ns_barrier")
    masks(16, 13, 14)
    a(f"""s_mul_i32 s7, s3, 1280
          v_add_u32 v6, s7, v6
          v_add_u32 v7, s7, v7
          v_lshl_add_u32 v4, v4, 1, s7
          s_mov_b32 s37, 0x3f803f80
          s_waitcnt vmcnt(9)
          ds_write_b128 v6, v[8:11] offset:{XL}
          ds_write_b32 v7, v12 offset:{XL+1024}
          v_dot2_f32_bf16 v20, v8, s37, 0
          v_dot2_f32_bf16 v21, v8, v8, 0""")
    for r in (9, 10, 11, 12):
        a(f"v_dot2_f32_bf16 v20, v{r}, s37, v20\nv_dot2_f32_bf16 v21, v{r}, v{r}, v21")
    a("s_waitcnt lgkmcnt(0)")
    for t in range(9): a(f"ds_read_u16 v{24+t}, v4 offset:{XL+2*t}")
    mktag()
    ln_stats(20, 21, 22, 23, math.log2(math.e) / math.sqrt(128.0))
    a("v_mul_f32 v20, v20, v21\ns_waitcnt lgkmcnt(0)")
    for t in range(9): a(f"v_lshlrev_b32 v{24+t}, 16, v{24+t}")
    for t in range(9): a(f"v_fma_f32 v{24+t}, v{24+t}, v21, -v20")
    for t in range(9): a(f"v_cvt_pk_bf16_f32 v{24+t}, v{24+t}, v{24+t}")
    for t in range(9):
        for dd in range(4): a(f"v_and_b32 v{100+4*t+dd}, v{24+t}, v{16+dd}")
    a(f"""s_lshl_b32 s7, s3, 9
          v_lshl_add_u32 v6, v1, 5, s7
          v_lshl_add_u32 v6, v2, 4, v6
          v_lshlrev_b32 v7, 4, v0
          s_lshl_b32 s7, s36, 9
          s_add_u32 s7, s7, {WS_A}
          v_add_u32 v5, s7, v7
          v_mov_b32 v13, 0xffffff00
          s_and_b32 s38, s6, 0xff
          s_bfe_u32 s39, s6, 0x80008
          s_bfe_u32 s40, s6, 0x80010
          s_lshr_b32 s41, s6, 24""")
    stamp(1)
    for t in range(9):
        a(f"s_waitcnt vmcnt({8-t})\nv_mfma_f32_16x16x32_bf16 v[8:11], {vr(100+4*t)}, {vr(64+4*t)}, {'0' if t == 0 else 'v[8:11]'}")
    stamp(2)
    a(f"""s_mov_b32 exec_hi, 0
          ds_write_b128 v6, v[8:11] offset:{QP}
          s_waitcnt lgkmcnt(0)
          s_barrier
          s_cmp_eq_u32 s3, 0
          s_cbranch_scc0 L_q_done""")
    for k in range(4): a(f"ds_read_b128 {vr(24+4*k)}, v7 offset:{QP+512*k}")
    a("""s_waitcnt lgkmcnt(2)
         v_pk_add_f32 v[24:25], v[24:25], v[28:29]
         v_pk_add_f32 v[26:27], v[26:27], v[30:31]
         s_waitcnt lgkmcnt(0)
         v_pk_add_f32 v[32:33], v[32:33], v[36:37]
         v_pk_add_f32 v[34:35], v[34:35], v[38:39]
         v_pk_add_f32 v[24:25], v[24:25], v[32:33]
         v_pk_add_f32 v[26:27], v[26:27], v[34:35]""")
    for k in range(4): a(f"v_and_or_b32 v{24+k}, v{24+k}, v13, s{38+k}")
    a(f"global_store_dwordx4 v5, v[24:27], {WS} sc1")
    stamp(3)
    a("""L_q_done:
         s_mov_b32 exec_hi, -1
         s_branch L_g1_join""")
    a(f"""L_quk:
          s_lshl_b32 s34, s33, 7
          s_lshl_b32 s7, s3, 5
          s_add_u32 s34, s34, s7
          s_sub_u32 s34, s34, 128
          v_lshl_add_u32 v4, v2, 3, s34
          v_lshl_add_u32 v5, v4, 13, v6
          s_waitcnt lgkmcnt(0)
          s_load_dword s6, {WS}, 0
          s_cmp_eq_u32 s3, 4
          s_cbranch_scc0 L_quk_nc""")
    a(f"""s_lshl_b32 s7, s36, 8
          s_add_u32 s7, s7, {WS_B}
          v_lshl_add_u32 v7, v1, 4, s7
          v_mul_u32_u24 v8, {WS_D-WS_B}, v2
          v_add_u32 v7, v7, v8
          v_mov_b32 v8, -1
          v_mov_b32 v9, -1
          v_mov_b32 v10, -1
          v_mov_b32 v11, -1
          s_mov_b32 exec_hi, 0
          global_store_dwordx4 v7, v[8:11], {WS} sc1
          s_mul_i32 s7, s36, 720
          s_add_u32 s7, s7, {WS_EF}
          s_mov_b32 exec_hi, 0x1fff
          v_lshl_add_u32 v12, v0, 4, s7
          global_store_dwordx4 v12, v[8:11], {WS} sc1
          s_mov_b32 exec_hi, -1
          L_quk_nc:
          s_barrier""")
    for t in range(8):
        a(f"global_load_dwordx4 {vr(64+4*t)}, v5, {WUK} nt")
        if t < 7: a("v_add_u32 v5, 0x2000, v5")
    a(f"""s_lshl_b32 s7, s32, 11
          s_add_u32 s7, s7, {WS_A}
          v_lshl_add_u32 v13, v2, 9, s7
          v_lshl_add_u32 v13, v1, 5, v13
          s_lshl_b32 s7, s32, 10
          s_add_u32 s7, s7, {WS_B}
          v_lshl_add_u32 v14, v4, 1, s7
          s_lshl_b32 s7, s36, 7
          s_add_u32 s7, s7, {WS_FLAG}
          v_mov_b32 v15, s7
          s_mov_b32 s37, 0x0c0c0400
          s_waitcnt lgkmcnt(0)""")
    mktag()
    a("v_mov_b32 v16, s6\ns_barrier")
    stamp(1)
    a(f"""L_a_poll:
          global_load_dwordx4 v[32:35], v13, {WS} sc1
          global_load_dwordx4 v[36:39], v13, {WS} offset:16 sc1""")
    tmo()
    a("""s_waitcnt vmcnt(0)
         v_perm_b32 v40, v33, v32, s37
         v_perm_b32 v41, v35, v34, s37
         v_perm_b32 v42, v37, v36, s37
         v_perm_b32 v43, v39, v38, s37
         v_lshl_or_b32 v40, v41, 16, v40
         v_lshl_or_b32 v42, v43, 16, v42
         v_cmp_ne_u32 vcc, s6, v40
         v_cmp_ne_u32 s[38:39], s6, v42
         s_or_b64 vcc, vcc, s[38:39]
         s_cbranch_vccnz L_a_poll""")
    stamp(2)
    a(f"""s_cmp_eq_u32 s3, 4
          s_cbranch_scc0 L_noflag
          s_mov_b64 exec, 1
          global_store_dword v15, v16, {WS} sc1
          s_mov_b64 exec, -1
          L_noflag:""")
    for k in range(4): a(f"v_permlane32_swap_b32 v{32+k}, v{36+k}")
    for k in range(4): a(f"v_add_f32 v{32+k}, v{32+k}, v{36+k}")
    a("""v_permlane16_swap_b32 v32, v34
         v_permlane16_swap_b32 v33, v35
         v_add_f32 v32, v32, v34
         v_add_f32 v33, v33, v35
         v_cvt_pk_bf16_f32 v40, v32, v33
         v_cvt_pk_bf16_f32 v41, v32, v33
         v_permlane16_swap_b32 v40, v41
         v_mov_b32 v42, v40
         v_mov_b32 v43, v41
         v_permlane32_swap_b32 v40, v42
         v_permlane32_swap_b32 v41, v43""")
    for dd in range(4):
        for t in range(8):
            a(f"v_dot2_f32_bf16 v{48+t}, v{64+4*t+dd}, v{40+dd}, {'0' if dd == 0 else 'v%d' % (48+t)}")
    for t in range(4): a(f"v_add_f32_dpp v{48+t}, v{48+t}, v{48+t} row_ror:8 row_mask:0xf bank_mask:0x3")
    for t in range(4): a(f"v_add_f32_dpp v{48+t}, v{52+t}, v{52+t} row_ror:8 row_mask:0xf bank_mask:0xc")
    for t in range(2): a(f"v_add_f32_dpp v{48+t}, v{48+t}, v{48+t} row_half_mirror row_mask:0xf bank_mask:0x5")
    for t in range(2): a(f"v_add_f32_dpp v{48+t}, v{50+t}, v{50+t} row_half_mirror row_mask:0xf bank_mask:0xa")
    for ctl in ["quad_perm:[1,0,3,2]", "quad_perm:[2,3,0,1]"]:
        for t in range(2): a(f"v_add_f32_dpp v{48+t}, v{48+t}, v{48+t} {ctl} row_mask:0xf bank_mask:0xf")
    a(f"""v_cvt_pk_bf16_f32 v56, v48, v49
          s_mov_b32 s38, 0x00010001
          v_mov_b32_dpp v57, v56 row_shl:4 row_mask:0xf bank_mask:0xf
          v_mov_b32_dpp v58, v56 row_shl:8 row_mask:0xf bank_mask:0xf
          v_mov_b32_dpp v59, v56 row_shl:12 row_mask:0xf bank_mask:0xf
          s_mov_b32 exec_lo, s38
          s_mov_b32 exec_hi, s38
          global_store_dwordx4 v14, v[56:59], {WS} sc1
          s_mov_b64 exec, -1""")
    stamp(3)
    a("L_g1_join:\ns_barrier")
    a(f"""s_lshl_b32 s7, s33, 7
          s_lshl_b32 s34, s3, 4
          s_add_u32 s7, s7, s34
          v_add_u32 v4, s7, v2
          v_and_b32 v5, 1, v2
          v_lshrrev_b32 v6, 1, v2
          v_lshl_or_b32 v5, v6, 2, v5
          v_xor_b32 v5, v5, v1
          v_lshlrev_b32 v5, 4, v5
          v_lshl_add_u32 v4, v4, 13, v5
          s_lshl_b32 s7, s32, 8
          v_add_u32 v4, s7, v4
          s_lshl_b32 s7, s3, 12
          s_add_u32 m0, s7, {UL}""")
    for i in range(4):
        a(f"global_load_lds_dwordx4 v4, {WUV} nt")
        if i < 3: a("v_add_u32 v4, 0x8000, v4\nv_xor_b32 v4, 0x80, v4\ns_add_u32 m0, m0, 1024")
    a(f"""s_cmp_lt_u32 s5, 9
          s_cbranch_scc0 L_no_wo_ld
          v_lshrrev_b32 v4, 3, v0
          v_bfe_u32 v5, v4, 1, 1
          v_and_b32 v6, 4, v4
          v_or_b32 v5, v5, v6
          v_and_b32 v6, 7, v0
          v_xor_b32 v5, v5, v6
          v_lshlrev_b32 v5, 4, v5
          s_lshl_b32 s7, s4, 9
          s_lshl_b32 s34, s3, 6
          s_add_u32 s7, s7, s34
          v_add_u32 v4, s7, v4
          v_mul_u32_u24 v4, 1152, v4
          s_lshl_b32 s7, s5, 7
          v_add3_u32 v4, v4, v5, s7
          s_lshl_b32 s7, s3, 13
          s_add_u32 m0, s7, {OL}""")
    for i in range(8):
        a(f"global_load_lds_dwordx4 v4, {WO} nt")
        if i < 7: a(f"v_add_u32 v4, {8*1152}, v4\ns_add_u32 m0, m0, 1024")
    a("L_no_wo_ld:")
    masks(16, 13, 14)
    a(f"""v_bfe_u32 v8, v0, 2, 3
          v_and_b32 v9, 1, v0
          v_bfe_u32 v10, v0, 1, 1
          s_lshr_b32 s7, s3, 1
          s_lshl_b32 s7, s7, 2
          s_and_b32 s34, s3, 1
          s_add_u32 s7, s7, s34
          v_lshl_add_u32 v11, v9, 1, s7""")
    a(f"""v_and_b32 v12, 1, v8
          v_lshrrev_b32 v13, 1, v8
          v_lshl_or_b32 v12, v13, 2, v12
          v_xor_b32 v12, v12, v11
          v_lshlrev_b32 v12, 4, v12
          v_lshl_add_u32 v12, v10, 3, v12
          v_lshrrev_b32 v13, 2, v0
          v_lshl_add_u32 v12, v13, 8, v12""")
    a(f"""v_bfe_u32 v13, v8, 1, 1
          v_and_b32 v14, 4, v8
          v_or_b32 v13, v13, v14
          v_xor_b32 v13, v13, v11
          v_lshlrev_b32 v13, 4, v13
          v_lshl_add_u32 v13, v10, 3, v13
          v_lshl_add_u32 v13, v8, 7, v13
          v_lshrrev_b32 v14, 5, v0
          v_lshl_add_u32 v13, v14, 10, v13
          v_add_u32 v13, {OL}, v13""")
    a(f"""s_lshl_b32 s7, s3, 12
          s_lshr_b32 s34, s32, 4
          s_lshl_b32 s34, s34, 8
          s_add_u32 s7, s7, s34
          s_and_b32 s34, s32, 15
          s_lshl_b32 s34, s34, 4
          s_add_u32 s7, s7, s34
          s_add_u32 s7, s7, {WS_ML}
          v_lshl_add_u32 v20, v0, 9, s7
          s_lshl_b32 s7, s36, 14
          s_lshl_b32 s34, s3, 11
          s_add_u32 s7, s7, s34
          s_add_u32 s7, s7, {WS_C}
          v_lshl_add_u32 v21, v0, 4, s7
          s_lshl_b32 s7, s3, 6
          s_add_u32 s7, s7, {MLL}
          v_lshl_add_u32 v22, v0, 3, s7
          v_lshl_add_u32 v23, v2, 3, s7
          v_lshlrev_b32 v24, 3, v0
          v_add_u32 v24, {MLL}, v24
          s_mul_i32 s7, s3, 288
          s_add_u32 s7, s7, {RL}
          v_lshl_add_u32 v25, v1, 4, s7
          v_lshl_add_u32 v25, v2, 3, v25
          v_and_b32 v26, 7, v0
          v_mul_u32_u24 v26, 288, v26
          v_lshl_add_u32 v26, v2, 4, v26
          v_add_u32 v26, {RL}, v26
          s_lshl_b32 s7, s36, 8
          s_lshl_b32 s34, s3, 5
          s_add_u32 s7, s7, s34
          s_add_u32 s7, s7, {WS_D}
          v_lshl_add_u32 v27, v0, 1, s7""")
    a(f"""v_and_b32 v28, 3, v1
          v_lshlrev_b32 v28, 8, v28
          v_lshrrev_b32 v29, 2, v1
          v_lshl_add_u32 v28, v29, 6, v28
          v_lshl_add_u32 v28, v2, 4, v28
          s_lshl_b32 s7, s4, 12
          s_add_u32 s7, s7, {WS_D}
          v_add_u32 v28, s7, v28
          s_mul_i32 s7, s4, 1152
          s_lshl_b32 s34, s5, 7
          s_add_u32 s7, s7, s34
          s_lshl_b32 s34, s3, 5
          s_add_u32 s7, s7, s34
          s_add_u32 s7, s7, {WS_EF}
          v_lshl_add_u32 v29, v0, 1, s7
          s_waitcnt vmcnt(0)
          s_barrier""")
    stamp(4)
    for s in range(4):
        for v in range(2): a(f"ds_read_b64_tr_b16 {vr(64+4*s+2*v,2)}, v12 offset:{UL+(32*s+16*v)*256}")
    a("""s_cmp_lt_u32 s5, 9
         s_cbranch_scc0 L_no_wo_fr
         s_cmp_lt_u32 s3, 4
         s_cbranch_scc0 L_no_wo_fr""")
    for hh in range(4):
        for s in range(4):
            for v in range(2): a(f"ds_read_b64_tr_b16 {vr(128+16*hh+4*s+2*v,2)}, v13 offset:{(16*hh+4*s+2*v)*1024}")
    a("L_no_wo_fr:\ns_waitcnt lgkmcnt(0)")
    a(f"""s_mov_b64 exec, 0xff
          L_ml_poll:
          global_load_dwordx3 v[32:34], v20, {WS} sc1""")
    tmo()
    a(f"""s_waitcnt vmcnt(0)
          v_cmp_ne_u32 vcc, s6, v34
          s_cbranch_vccnz L_ml_poll
          s_mov_b64 exec, -1
          global_load_dwordx4 v[40:43], v21, {WS} sc1
          global_load_dwordx4 v[44:47], v21, {WS} offset:1024 sc1
          s_mov_b64 exec, 0xff
          ds_write_b64 v22, v[32:33]
          s_mov_b64 exec, -1""")
    stamp(5)
    a(f"""s_waitcnt lgkmcnt(0)
          s_barrier
          ds_read_b64 v[32:33], v24
          ds_read_b32 v36, v23
          ds_read_b32 v37, v23 offset:32
          s_waitcnt lgkmcnt(2)
          v_mov_b32 v34, v32""")
    allred_row([34], "v_max_f32")
    allred_g([34], [35], "v_max_f32")
    a("""s_waitcnt lgkmcnt(0)
         v_sub_f32 v32, v32, v34
         v_sub_f32 v36, v36, v34
         v_sub_f32 v37, v37, v34
         v_exp_f32 v32, v32
         v_exp_f32 v36, v36
         v_exp_f32 v37, v37
         v_cvt_pk_bf16_f32 v32, v32, v32
         v_cvt_pk_bf16_f32 v36, v36, v36
         v_cvt_pk_bf16_f32 v37, v37, v37
         v_and_b32 v32, 0xffff0000, v32
         v_mul_f32 v33, v33, v32""")
    for dd in range(4): a(f"v_and_b32 v{48+dd}, v36, v{16+dd}\nv_and_b32 v{52+dd}, v37, v{16+dd}")
    allred_row([33], "v_add_f32")
    allred_g([33], [35], "v_add_f32")
    a(f"""v_rcp_f32 v33, v33
          L_c_chk:
          s_waitcnt vmcnt(0)
          v_max_u32 v35, v40, v44
          v_cmp_eq_u32 vcc, -1, v35
          s_cbranch_vccz L_c_ok""")
    tmo()
    a(f"""global_load_dwordx4 v[40:43], v21, {WS} sc1
          global_load_dwordx4 v[44:47], v21, {WS} offset:1024 sc1
          s_branch L_c_chk
          L_c_ok:""")
    stamp(6)
    a(f"""v_mfma_f32_16x16x32_bf16 v[56:59], v[48:51], v[40:43], 0
          v_mfma_f32_16x16x32_bf16 v[56:59], v[52:55], v[44:47], v[56:59]
          s_mov_b32 exec_hi, 0
          v_cvt_pk_bf16_f32 v56, v56, v57
          v_cvt_pk_bf16_f32 v57, v58, v59
          ds_write_b64 v25, v[56:57]
          s_mov_b32 exec_hi, -1
          s_waitcnt lgkmcnt(0)
          s_barrier""")
    for s in range(4): a(f"ds_read_b128 {vr(40+4*s)}, v26 offset:{64*s}")
    for s in range(4):
        a(f"s_waitcnt lgkmcnt({3-s})\nv_mfma_f32_16x16x32_bf16 v[56:59], {vr(40+4*s)}, {vr(64+4*s)}, {'0' if s == 0 else 'v[56:59]'}")
    a("""v_pk_add_f32 v[56:57], v[56:57], v[58:59]
         v_add_f32 v56, v56, v57""")
    allred_g([56], [57], "v_add_f32", steps=(16,))
    a("v_mul_f32 v56, v56, v33")
    pack16(56, 57, 60)
    a(f"""s_mov_b64 exec, 0x101
          global_store_dwordx4 v27, v[60:63], {WS} sc1
          s_mov_b64 exec, -1""")
    stamp(7)
    a("""s_cmp_lt_u32 s5, 9
         s_cbranch_scc0 L_reduce
         s_cmp_lt_u32 s3, 4
         s_cbranch_scc0 L_end
         L_d_poll:""")
    for hh in range(4): a(f"global_load_dwordx4 {vr(40+4*hh)}, v28, {WS} offset:{1024*hh} sc1")
    tmo()
    a("""s_waitcnt vmcnt(0)
         v_max3_u32 v35, v40, v44, v48
         v_max_u32 v35, v35, v52
         v_cmp_eq_u32 vcc, -1, v35
         s_cbranch_vccnz L_d_poll""")
    stamp(8)
    for s in range(4):
        for hh in range(4):
            a(f"v_mfma_f32_16x16x32_bf16 {vr(80+4*s)}, {vr(40+4*hh)}, {vr(128+16*hh+4*s)}, {'0' if hh == 0 else vr(80+4*s)}")
    for s in range(4):
        a(f"v_pk_add_f32 {vr(80+4*s,2)}, {vr(80+4*s,2)}, {vr(82+4*s,2)}")
    for s in range(4):
        a(f"v_add_f32_dpp v56, v{80+4*s}, v{81+4*s} quad_perm:[0,1,2,3] row_mask:{1<<s:#x} bank_mask:0xf")
    allred_g([56], [57], "v_add_f32")
    pack16(56, 57, 60)
    a(f"""s_mov_b64 exec, 0x101
          global_store_dwordx4 v29, v[60:63], {WS} sc1""")
    stamp(9)
    a("s_branch L_end")
    a(f"""L_reduce:
          s_cmp_ge_u32 s2, 119
          s_cbranch_scc0 L_end
          s_cmp_eq_u32 s3, 0
          s_cbranch_scc0 L_end
          s_sub_u32 s34, s2, 119
          s_lshl_b32 s34, s34, 7
          v_lshrrev_b32 v4, 3, v0
          v_mul_u32_u24 v4, 1152, v4
          v_and_b32 v5, 7, v0
          v_lshl_add_u32 v4, v5, 4, v4
          s_add_u32 s7, s34, {WS_EF}
          v_add_u32 v80, s7, v4
          v_lshrrev_b32 v6, 2, v5
          v_lshlrev_b32 v6, 6, v6
          v_and_b32 v7, 3, v5
          v_lshl_add_u32 v6, v7, 3, v6
          v_and_b32 v7, 1, v2
          v_lshl_add_u32 v6, v7, 5, v6
          v_add_u32 v6, s34, v6
          global_load_dwordx2 v[8:9], v6, {X}""")
    for z in range(1, 10): a(f"v_add_u32 v{80+z}, {9216*z}, v80")
    a("s_mov_b32 s37, 0x3f803f80")
    for dd in range(4): a(f"v_and_b32 v{16+dd}, s37, v{16+dd}")
    a("""v_cmp_gt_u32 vcc, 8, v1
         s_waitcnt vmcnt(0)
         v_cndmask_b32 v8, 0, v8, vcc
         v_cndmask_b32 v9, 0, v9, vcc
         v_lshlrev_b32 v56, 16, v8
         v_and_b32 v57, 0xffff0000, v8
         v_lshlrev_b32 v58, 16, v9
         v_and_b32 v59, 0xffff0000, v9
         L_f_poll:""")
    for z in range(10): a(f"global_load_dwordx4 {vr(96+4*z)}, v{80+z}, {WS} sc1")
    tmo()
    a("""s_waitcnt vmcnt(0)
         v_max3_u32 v35, v96, v100, v104
         v_max3_u32 v36, v108, v112, v116
         v_max3_u32 v35, v35, v120, v124
         v_max3_u32 v36, v36, v128, v132
         v_max_u32 v35, v35, v36
         v_cmp_eq_u32 vcc, -1, v35
         s_cbranch_vccnz L_f_poll""")
    stamp(8)
    for z in range(10): a(f"v_mfma_f32_16x16x32_bf16 v[56:59], v[16:19], {vr(96+4*z)}, v[56:59]")
    for k in range(4): a(f"v_add_f32_dpp v{56+k}, v{56+k}, v{56+k} row_ror:8 row_mask:0xf bank_mask:0xf")
    a(f"""v_cvt_pk_bf16_f32 v56, v56, v57
          v_cvt_pk_bf16_f32 v57, v58, v59
          s_mov_b64 exec, 0x00ff00ff
          global_store_dwordx2 v6, v[56:57], {OUT}
          s_cmp_eq_u32 s2, 127
          s_cbranch_scc0 L_red_done
          v_mov_b32 v4, 0
          v_mov_b32 v5, s6
          s_mov_b64 exec, 1
          global_store_dword v4, v5, {WS}
          L_red_done:""")
    stamp(9)
    a("s_branch L_end")

    a(f"""L_att:
          s_sub_u32 s5, s5, 16
          s_lshr_b32 s32, s5, 1
          s_lshl_b32 s7, s4, 3
          s_add_u32 s32, s32, s7
          s_and_b32 s33, s5, 1""")
    a(f"""s_lshl_b32 s7, s33, 20
          s_lshr_b32 s34, s3, 1
          s_lshl_b32 s34, s34, 14
          s_add_u32 s7, s7, s34
          s_lshl_b32 s34, s32, 8
          s_add_u32 s7, s7, s34
          s_and_b32 s36, s3, 1
          s_lshl_b32 s34, s36, 7
          s_add_u32 s7, s7, s34
          s_add_u32 s7, s7, {WS_C}
          v_lshl_add_u32 v20, v1, 16, s7
          v_lshl_add_u32 v20, v2, 4, v20
          v_mov_b32 v8, -1
          v_mov_b32 v9, -1
          v_mov_b32 v10, -1
          v_mov_b32 v11, -1
          s_waitcnt lgkmcnt(0)
          global_store_dwordx4 v20, v[8:11], {WS} sc1
          global_store_dwordx4 v20, v[8:11], {WS} offset:64 sc1
          s_load_dword s6, {WS}, 0""")
    a(f"""v_xor_b32 v4, s36, v0
          v_lshlrev_b32 v4, 4, v4""")
    for i in range(8): a(f"v_xor_b32 v{24+i}, {32*i}, v4\nv_add_u32 v{24+i}, {1024*i}, v{24+i}")
    a(f"""s_lshl_b32 s38, s33, 6
          s_lshl_b32 s7, s3, 3
          s_add_u32 s38, s38, s7
          s_lshl_b32 s38, s38, 10
          s_lshl_b32 s7, s32, 17
          s_add_u32 s42, s10, s7
          s_addc_u32 s43, s11, 0
          s_xor_b32 s39, s38, 0x10000
          s_add_u32 s44, s42, s38
          s_addc_u32 s45, s43, 0
          s_add_u32 s46, s42, s39
          s_addc_u32 s47, s43, 0
          s_cmp_eq_u32 s3, 0
          s_cbranch_scc0 L_att_noinit
          v_mov_b32 v5, 0xff800000
          v_cmp_gt_u32 vcc, 16, v0
          v_lshlrev_b32 v6, 2, v0
          v_cndmask_b32 v5, 0, v5, vcc
          v_add_u32 v6, {MM}, v6
          v_mov_b32 v7, 0
          s_mov_b32 exec_hi, 0
          ds_write_b32 v6, v5
          ds_write_b32 v6, v7 offset:{HL+1152-MM}
          s_mov_b32 exec_hi, -1
          L_att_noinit:
          s_mov_b32 m0, s38
          s_waitcnt vmcnt(0)""")
    stamp(1)
    for i in range(8):
        a(f"global_load_lds_dwordx4 v{24+i}, s[44:45] nt")
        a("s_add_u32 m0, m0, 1024" if i < 7 else "s_mov_b32 m0, s39")
    a("s_barrier")
    for i in range(8):
        a(f"global_load_lds_dwordx4 v{24+i}, s[46:47] nt")
        if i < 7: a("s_add_u32 m0, m0, 1024")
    a(f"""v_lshlrev_b32 v4, 1, v1
          v_and_b32 v4, 15, v4
          v_lshrrev_b32 v5, 3, v1
          v_or_b32 v4, v4, v5
          v_lshlrev_b32 v4, 4, v4
          v_lshl_add_u32 v4, v2, 8, v4
          v_lshl_add_u32 v4, v1, 10, v4
          s_lshl_b32 s7, s3, 14
          v_add_u32 v4, s7, v4""")
    for s in range(16): a(f"v_xor_b32 v{32+s}, {16*s}, v4")
    a(f"""v_lshrrev_b32 v5, 2, v0
          v_lshlrev_b32 v6, 1, v5
          v_and_b32 v6, 15, v6
          v_lshrrev_b32 v7, 3, v5
          v_or_b32 v6, v6, v7
          v_bfe_u32 v7, v0, 1, 1
          s_lshl_b32 s7, s3, 3
          v_add_u32 v7, s7, v7
          v_xor_b32 v6, v6, v7
          v_lshlrev_b32 v6, 4, v6
          v_and_b32 v7, 1, v0
          v_lshl_add_u32 v6, v7, 3, v6
          v_lshl_add_u32 v6, v5, 10, v6""")
    for u in range(4): a(f"v_xor_b32 v{48+u}, {32*u}, v6\nv_add_u32 v{52+u}, 0x10000, v{48+u}")
    a(f"""v_lshrrev_b32 v5, 3, v1
          v_xor_b32 v5, s33, v5
          v_lshlrev_b32 v5, 6, v5
          v_and_b32 v6, 7, v1
          s_lshl_b32 s7, s3, 3
          v_add3_u32 v5, v5, v6, s7
          v_lshlrev_b32 v5, 7, v5
          v_add_u32 v21, {WS_FLAG}, v5
          s_lshl_b32 s7, s3, 2
          s_and_b32 s7, s7, 15
          s_lshr_b32 s34, s3, 2
          s_or_b32 s7, s7, s34
          v_xor_b32 v5, s7, v0
          v_xor_b32 v6, 2, v5
          s_lshl_b32 s7, s33, 14
          s_lshl_b32 s34, s3, 11
          s_add_u32 s7, s7, s34
          s_add_u32 s7, s7, {WS_B}
          v_lshl_add_u32 v22, v5, 4, s7
          v_lshl_add_u32 v23, v6, 4, s7
          s_add_u32 s48, s34, {QL}
          v_lshlrev_b32 v56, 2, v1
          v_add_u32 v56, {MM}, v56
          v_lshlrev_b32 v57, 4, v0
          v_add_u32 v57, {PL}, v57
          s_lshr_b32 s7, s3, 1
          s_lshl_b32 s7, s7, 10
          s_lshl_b32 s34, s36, 3
          s_add_u32 s7, s7, s34
          v_add_u32 v58, s7, v57
          s_lshl_b32 s7, s32, 1
          s_add_u32 s7, s7, s33
          s_lshl_b32 s7, s7, 8
          s_add_u32 s7, s7, {WS_ML}
          v_lshl_add_u32 v59, v0, 4, s7
          s_waitcnt vmcnt(0) lgkmcnt(0)
          s_barrier""")
    stamp(2)
    mktag()
    for s in range(16): a(f"ds_read_b128 {vr(64+4*s)}, v{32+s}")
    for u in range(4):
        for t in range(4):
            for v in range(2):
                off = (32*t+16*v)*1024
                a(f"ds_read_b64_tr_b16 {vr(128+16*u+4*t+2*v,2)}, v{(48 if off < 65536 else 52)+u} offset:{off & 0xffff}")
    a(f"s_lshl_b32 s7, s3, 14\ns_sub_u32 s7, {QL}, s7")
    for s in range(16): a(f"v_add_u32 v{32+s}, s7, v{32+s}")
    a("s_waitcnt lgkmcnt(0)")
    stamp(3)
    a(f"""s_mov_b64 exec, 0xffff
          L_flag_poll:
          global_load_dword v4, v21, {WS} sc1""")
    tmo()
    a(f"""s_waitcnt vmcnt(0)
          v_cmp_ne_u32 vcc, s6, v4
          s_cbranch_vccnz L_flag_poll
          s_mov_b64 exec, -1""")
    stamp(4)
    a(f"""L_q_fetch:
          s_mov_b32 m0, s48
          s_nop 0
          global_load_lds_dwordx4 v22, {WS} sc1
          global_load_lds_dwordx4 v23, {WS} offset:1024 sc1
          s_waitcnt vmcnt(0)
          s_barrier""")
    stamp(5)
    for s in range(15): a(f"ds_read_b128 {vr(192+4*s)}, v{32+s}")
    a(f"s_waitcnt lgkmcnt(14)\nds_read_b128 {vr(192+60)}, v47")
    for s in range(16):
        if s > 0: a(f"s_waitcnt lgkmcnt({15-s})")
        a(f"v_mfma_f32_16x16x32_bf16 v[8:11], {vr(64+4*s)}, {vr(192+4*s)}, {'0' if s == 0 else 'v[8:11]'}")
        if s == 1: a("v_max_u32 v4, v192, v196")
        elif s & 1: a(f"v_max3_u32 v4, v4, v{192+4*(s-1)}, v{192+4*s}")
    a("""v_cmp_eq_u32 vcc, -1, v4
         s_cbranch_vccz L_q_ok""")
    tmo()
    a("""s_barrier
         s_branch L_q_fetch
         L_q_ok:
         s_nop 4
         v_max3_f32 v4, v8, v9, v10
         v_max_f32 v4, v4, v11
         ds_max_f32 v56, v4
         s_waitcnt lgkmcnt(0)
         s_barrier
         ds_read_b32 v12, v56
         s_waitcnt lgkmcnt(0)""")
    for k in range(4): a(f"v_sub_f32 v{8+k}, v{8+k}, v12")
    for k in range(4): a(f"v_exp_f32 v{8+k}, v{8+k}")
    a(f"""v_cvt_pk_bf16_f32 v4, v8, v9
          v_cvt_pk_bf16_f32 v5, v10, v11
          ds_write_b64 v58, v[4:5]
          v_add_f32 v8, v8, v9
          v_add_f32 v10, v10, v11
          v_add_f32 v8, v8, v10
          ds_add_f32 v56, v8 offset:{LL-MM}
          s_waitcnt lgkmcnt(0)
          s_barrier""")
    stamp(6)
    for t in range(4): a(f"ds_read_b128 {vr(192+4*t)}, v57 offset:{1024*t}")
    a(f"""s_cmp_eq_u32 s3, 7
          s_cbranch_scc0 L_no_ml
          ds_read_b32 v13, v56 offset:{LL-MM}
          v_mov_b32 v14, s6
          v_mov_b32 v15, s6
          s_mov_b64 exec, 0xffff
          s_waitcnt lgkmcnt(0)
          global_store_dwordx4 v59, v[12:15], {WS} sc1
          s_mov_b64 exec, -1
          L_no_ml:""")
    for u in range(4):
        for t in range(4):
            if u == 0: a(f"s_waitcnt lgkmcnt({3-t})")
            a(f"v_mfma_f32_16x16x32_bf16 {vr(208+4*u)}, {vr(128+16*u+4*t)}, {vr(192+4*t)}, {'0' if t == 0 else vr(208+4*u)}")
            if u == 3 and t == 1:
                a("v_cvt_pk_bf16_f32 v224, v208, v209\nv_cvt_pk_bf16_f32 v225, v210, v211")
            if u == 3 and t == 3:
                a(f"""v_cvt_pk_bf16_f32 v226, v212, v213
                      v_cvt_pk_bf16_f32 v227, v214, v215
                      global_store_dwordx4 v20, v[224:227], {WS} sc1""")
    a(f"""v_cvt_pk_bf16_f32 v228, v216, v217
          v_cvt_pk_bf16_f32 v229, v218, v219
          v_cvt_pk_bf16_f32 v230, v220, v221
          v_cvt_pk_bf16_f32 v231, v222, v223
          global_store_dwordx4 v20, v[228:231], {WS} offset:64 sc1""")
    stamp(7)
    a(f"""s_cmp_lt_u32 s5, 9
          s_cbranch_scc0 L_end
          s_mul_i32 s32, s4, 9
          s_add_u32 s32, s32, s5
          v_lshrrev_b32 v4, 3, v0
          v_and_b32 v5, 6, v4
          v_and_b32 v6, 7, v0
          v_xor_b32 v5, v5, v6
          v_lshlrev_b32 v5, 4, v5
          s_mul_i32 s7, s3, 72
          v_add_u32 v6, s7, v4
          v_mul_u32_u24 v6, 9216, v6
          s_lshl_b32 s7, s32, 7
          v_add3_u32 v6, v6, v5, s7
          s_lshl_b32 s7, s32, 6
          s_lshl_b32 s34, s3, 3
          s_add_u32 s7, s7, s34
          v_add_u32 v7, s7, v4
          v_mul_u32_u24 v7, 1152, v7
          v_add_u32 v7, v7, v5
          s_mul_i32 s34, s3, 9216
          s_add_u32 m0, s34, {W1L}
          s_barrier""")
    for i in range(9):
        a(f"global_load_lds_dwordx4 v6, {W1} nt")
        if i < 8: a(f"v_add_u32 v6, {8*9216}, v6\ns_add_u32 m0, m0, 1024")
    a(f"s_add_u32 m0, s34, {W2L}")
    for i in range(9):
        a(f"global_load_lds_dwordx4 v7, {W2} offset:{128*i} nt")
        if i < 8: a(f"s_add_u32 m0, m0, {1024-128}")
    a(f"""v_lshrrev_b32 v8, 2, v1
          v_lshlrev_b32 v8, 5, v8
          v_and_b32 v9, 3, v1
          v_lshl_add_u32 v8, v9, 2, v8
          v_and_b32 v9, 1, v2
          v_lshl_add_u32 v8, v9, 4, v8
          s_lshl_b32 s7, s3, 7
          v_add_u32 v8, s7, v8
          v_min_u32 v8, 572, v8
          v_lshlrev_b32 v8, 1, v8
          global_load_dwordx2 v[10:11], v8, {X}""")
    masks(16, 13, 14)
    a("s_mov_b32 s37, 0x3f803f80")
    for dd in range(4): a(f"v_and_b32 v{16+dd}, s37, v{16+dd}\nv_mov_b32 v{60+dd}, s37")
    a(f"""v_bfe_u32 v4, v0, 2, 3
          v_and_b32 v5, 6, v4
          v_bfe_u32 v6, v0, 1, 1
          v_xor_b32 v5, v5, v6
          v_lshlrev_b32 v5, 4, v5
          v_and_b32 v6, 1, v0
          v_lshl_add_u32 v5, v6, 3, v5
          v_lshl_add_u32 v5, v4, 7, v5
          v_lshrrev_b32 v6, 5, v0
          s_and_b32 s7, s3, 3
          s_lshl_b32 s7, s7, 5
          v_xor_b32 v21, s7, v5
          v_lshl_add_u32 v21, v6, 10, v21
          v_add_u32 v22, 0x8000, v21
          s_lshl_b32 s7, s36, 6
          v_xor_b32 v23, s7, v5
          v_mul_u32_u24 v6, 9216, v6
          s_lshr_b32 s7, s3, 1
          s_lshl_b32 s7, s7, 10
          s_add_u32 s7, s7, {W2L}
          v_add3_u32 v23, v23, v6, s7
          v_xor_b32 v24, 32, v23""")
    a(f"""s_lshl_b32 s7, s3, 8
          v_lshl_add_u32 v26, v1, 4, s7
          v_min_u32 v25, 1136, v26
          v_mul_u32_u24 v4, 1152, v2
          v_add_u32 v25, v25, v4
          v_add_u32 v25, {WS_EF}, v25
          v_add_u32 v33, {4*1152}, v25
          v_lshl_add_u32 v26, v2, 3, v26
          v_add_u32 v26, {HL}, v26
          v_lshlrev_b32 v27, 4, v2
          v_add_u32 v31, {FL}, v27
          v_add_u32 v27, {HL}, v27
          v_lshlrev_b32 v28, 4, v0
          v_add_u32 v28, {HL}, v28
          v_lshlrev_b32 v29, 2, v0
          v_add_u32 v29, {HL+1024}, v29
          v_lshrrev_b32 v4, 2, v1
          v_lshlrev_b32 v4, 4, v4
          v_and_b32 v5, 3, v1
          v_lshl_add_u32 v4, v5, 1, v4
          s_lshr_b32 s7, s3, 1
          s_lshl_b32 s7, s7, 6
          s_lshl_b32 s34, s36, 3
          s_add_u32 s7, s7, s34
          s_add_u32 s7, s7, {FL}
          v_add_u32 v30, s7, v4
          s_mul_i32 s7, s32, 1152
          s_lshr_b32 s34, s3, 1
          s_lshl_b32 s34, s34, 7
          s_add_u32 s7, s7, s34
          s_lshl_b32 s34, s36, 6
          s_add_u32 s7, s7, s34
          s_add_u32 s7, s7, {WS_EF + 8*1152}
          v_lshl_add_u32 v32, v2, 4, s7
          s_waitcnt vmcnt(0)
          s_barrier""")
    stamp(8)
    def w2fr(z):
        for nu in range(2):
            for s in range(2):
                for v in range(2):
                    a(f"ds_read_b64_tr_b16 {vr(208+16*z+8*nu+4*s+2*v,2)}, v{23+nu} offset:{((4*s+2*v)*9+4*z)*1024}")
    w2fr(0); w2fr(1)
    a("""v_lshlrev_b32 v56, 16, v10
         v_and_b32 v57, 0xffff0000, v10
         v_lshlrev_b32 v58, 16, v11
         v_and_b32 v59, 0xffff0000, v11
         s_cmp_lt_u32 s3, 4
         s_cbranch_scc0 L_ffn_fr_done""")
    for s in range(18):
        for v in range(2):
            off = (4*s+2*v)*1024
            a(f"ds_read_b64_tr_b16 {vr(64+4*s+2*v,2)}, v{21 if off < 32768 else 22} offset:{off if off < 32768 else off-32768}")
    a("s_cmp_lt_u32 s3, 2\ns_cbranch_scc0 L_ffn_no3")
    w2fr(2)
    a("L_ffn_no3:\ns_waitcnt lgkmcnt(0)")
    for s in range(18):
        a(f"v_mfma_f32_16x16x32_bf16 v[52:55], v[60:63], {vr(64+4*s)}, {'0' if s == 0 else 'v[52:55]'}")
    a(f"""L_ffn_fr_done:
          s_waitcnt lgkmcnt(0)
          s_cmp_lt_u32 s3, 5
          s_cbranch_scc0 L_ffn_h_done
          s_mov_b32 s38, -1
          s_cmp_eq_u32 s3, 4
          s_cselect_b32 s38, 0x00ff00ff, s38
          L_e_poll:
          global_load_dwordx4 v[40:43], v25, {WS} sc1
          global_load_dwordx4 v[44:47], v33, {WS} sc1""")
    tmo()
    a("""s_waitcnt vmcnt(0)
         v_max_u32 v35, v40, v44
         v_cmp_eq_u32 vcc, -1, v35
         s_cbranch_vccnz L_e_poll""")
    stamp(9)
    a(f"""v_mfma_f32_16x16x32_bf16 v[56:59], v[16:19], v[40:43], v[56:59]
          v_mfma_f32_16x16x32_bf16 v[56:59], v[16:19], v[44:47], v[56:59]
          s_mov_b32 exec_lo, s38
          s_mov_b32 exec_hi, 0
          v_cvt_pk_bf16_f32 v56, v56, v57
          v_cvt_pk_bf16_f32 v57, v58, v59
          ds_write_b64 v26, v[56:57]
          s_mov_b64 exec, -1
          s_waitcnt lgkmcnt(0)
          L_ffn_h_done:
          s_barrier
          s_cmp_lt_u32 s3, 4
          s_cbranch_scc0 L_ffn_f_done
          ds_read_b128 v[40:43], v28
          ds_read_b32 v44, v29""")
    for s in range(13): a(f"ds_read_b128 {vr(136+4*s)}, v27 offset:{64*s}")
    st = Asm()
    side = []
    side.append("v_dot2_f32_bf16 v46, v40, s37, 0"); side.append("v_dot2_f32_bf16 v47, v40, v40, 0")
    for r in (41, 42, 43, 44):
        side.append(f"v_dot2_f32_bf16 v46, v{r}, s37, v46"); side.append(f"v_dot2_f32_bf16 v47, v{r}, v{r}, v47")
    for ctl in ["quad_perm:[1,0,3,2]", "quad_perm:[2,3,0,1]", "row_half_mirror", "row_mirror"]:
        for r in (46, 47): side.append(f"v_add_f32_dpp v{r}, v{r}, v{r} {ctl} row_mask:0xf bank_mask:0xf")
    for stp in (16, 32):
        side += ["v_mov_b32 v48, v46", "v_mov_b32 v49, v47", f"v_permlane{stp}_swap_b32 v46, v48", f"v_permlane{stp}_swap_b32 v47, v49",
                 "v_add_f32 v46, v46, v48", "v_add_f32 v47, v47, v49"]
    side += [f"v_mul_f32 v46, {f32(1/576)}, v46", f"v_mul_f32 v47, {f32(1/576)}, v47", "v_fma_f32 v47, -v46, v46, v47",
             "v_max_f32 v47, 0, v47", f"v_add_f32 v47, {f32(1e-5)}, v47", "v_rsq_f32 v47, v47", "v_mul_f32 v46, v46, v52"]
    outstanding = 15
    for s in range(18):
        issued = 2 + min(18, 13 + s)
        a(f"s_waitcnt lgkmcnt({issued - (2 + s + 1)})")
        a(f"v_mfma_f32_16x16x32_bf16 v[8:11], {vr(136+4*s)}, {vr(64+4*s)}, {'0' if s == 0 else 'v[8:11]'}")
        if s < 5: a(f"ds_read_b128 {vr(136+4*(13+s))}, v27 offset:{64*(13+s)}")
        for _ in range(2):
            if side: a(side.pop(0))
    for x in side: a(x)
    a(f"""v_sub_f32 v8, v8, v46
          v_mul_f32 v8, v8, v47
          v_mul_f32 v9, {f32(-math.log2(math.e))}, v8
          v_exp_f32 v9, v9
          v_add_f32 v9, 1.0, v9
          v_rcp_f32 v9, v9
          v_mul_f32 v8, v8, v9
          v_cvt_pk_bf16_f32 v8, v8, v8
          s_mov_b64 exec, 0xffff
          ds_write_b16 v30, v8
          s_mov_b64 exec, -1
          s_waitcnt lgkmcnt(0)
          L_ffn_f_done:
          s_barrier
          ds_read_b128 v[40:43], v31
          ds_read_b128 v[44:47], v31 offset:64
          s_mov_b32 s38, 0x00010001
          s_mov_b32 s39, 0x00010001""")
    stamp(10)
    def unit(z):
        for nu in range(2):
            for s in range(2):
                if z == 0 and nu == 0: a(f"s_waitcnt lgkmcnt({1-s})")
                d = vr(64+8*z+4*nu)
                a(f"v_mfma_f32_16x16x32_bf16 {d}, {vr(208+16*z+8*nu+4*s)}, {vr(40+4*s)}, {'0' if s == 0 else d}")
    def fin(z):
        b = 64 + 8*z
        for k in range(4): a(f"v_cvt_pk_bf16_f32 v{96+4*z+k}, v{b+2*k}, v{b+2*k+1}")
        a(f"s_mov_b64 exec, s[38:39]\nglobal_store_dwordx4 v32, {vr(96+4*z)}, {WS} offset:{512*z} sc1\ns_mov_b64 exec, -1")
    unit(0); unit(1)
    a("s_cmp_lt_u32 s3, 2\ns_cbranch_scc1 L_ffn_three")
    fin(0); fin(1)
    stamp(11)
    a("s_branch L_end\nL_ffn_three:")
    unit(2); fin(0); fin(1); fin(2)
    stamp(11)
    a("L_end:")
    if diag:
        a("s_mov_b64 exec, -1\ns_waitcnt lgkmcnt(0)\nv_mov_b32 v4, 0")
        for i in range(12): a(f"v_writelane_b32 v4, s{64+2*i}, {i}")
        a(f"""s_getreg_b32 s7, hwreg(HW_REG_XCC_ID)
              v_writelane_b32 v4, s7, 12
              v_writelane_b32 v4, s35, 13
              s_lshl_b32 s7, s2, 3
              s_add_u32 s7, s7, s3
              s_lshl_b32 s7, s7, 6
              s_add_u32 s7, s7, {WS_STAMP}
              v_lshl_add_u32 v5, v0, 2, s7
              s_mov_b64 exec, 0xffff
              global_store_dword v5, v4, {WS}""")
    a("L_exit:\ns_endpgm\nL_codeend:")
    body = a.finish()
    hdr = open("sequential_preLN__compressed_kv_cla__dense_activation_silu__decode.s.ref").read().split("; Override launch")[0]
    txt = hdr + f"""; One persistent launch, one workgroup per CU.  Generated by my own script (gen/gen.py).
; @launch grid=(256,1,1) block=(512,1,1) lds={LDS_BYTES}
.amdgcn_target "amdgcn-amd-amdhsa--gfx950"
.text
.globl {KNAME}
.p2align 8
.type {KNAME},@function
{KNAME}:
{body}
.section .rodata,"a"
.p2align 6
.amdhsa_kernel {KNAME}
  .amdhsa_next_free_vgpr 256
  .amdhsa_next_free_sgpr 96
  .amdhsa_accum_offset 256
  .amdhsa_group_segment_fixed_size 0
  .amdhsa_kernarg_size 96
  .amdhsa_user_sgpr_count 2
  .amdhsa_user_sgpr_kernarg_segment_ptr 1
  .amdhsa_system_sgpr_workgroup_id_x 1
.end_amdhsa_kernel
"""
    return txt

if __name__ == "__main__":
    diag = "--diag" in sys.argv
    out = [x for x in sys.argv[1:] if not x.startswith("--")][0]
    open(out, "w").write(gen(diag))
```
